```python
import torch

def _softmax(x, axis=-1):
    return torch.softmax(x, dim=axis)

def _gelu(x):
    return torch.nn.functional.gelu(x, approximate='tanh')

def _silu(x):
    return torch.nn.functional.silu(x)

def _sigmoid(x):
    return torch.sigmoid(x)

def _layernorm(x, axis=-1, eps=1e-05):
    m = x.mean(dim=axis, keepdim=True)
    v = x.var(dim=axis, keepdim=True, unbiased=False)
    return (x - m) / torch.sqrt(v + eps)

def _scatter_add(tgt, idx, src, axis=0):
    return tgt.clone().index_add_(axis, idx, src)

def _segment_sum(src, seg, n):
    out = torch.zeros((n,) + src.shape[1:], dtype=src.dtype)
    return out.index_add_(0, seg, src)

def _pad(x, pw):
    flat = tuple((v for pair in reversed(pw) for v in pair))
    return torch.nn.functional.pad(x, flat)
kernel_name = 'recurrent_scan__memory_aug_recurrent_mem_tr__glu_gated_bilinear__prompt'

def setup_inputs():

    _w = lambda a: (lambda t: t.to(torch.bfloat16) if t.is_floating_point() else t)(torch.as_tensor(a))

    def _A_setup():
        B, S, Dm = (1, 2048, 512)
        H, Dh = (32, 128)
        M, seg = (8, 32)
        seg = min(seg, S)
        S = S // seg * seg
        return {'x': _w((lambda *s: torch.randn(*s, dtype=torch.bfloat16) * 0.1)(B, S, Dm)), 'mem0': _w((lambda *s: torch.randn(*s, dtype=torch.bfloat16) * 1.6)(B, M, Dm)), 'Wq': _w((lambda *s: torch.randn(*s, dtype=torch.bfloat16) * 0.8)(Dm, H, Dh) * Dm ** (-0.5)), 'Wk': _w((lambda *s: torch.randn(*s, dtype=torch.bfloat16) * 0.8)(Dm, H, Dh) * Dm ** (-0.5)), 'Wv': _w((lambda *s: torch.randn(*s, dtype=torch.bfloat16) * 1.6)(Dm, H, Dh) * Dm ** (-0.5)), 'Wo': _w((lambda *s: torch.randn(*s, dtype=torch.bfloat16) * 1.6)(H, Dh, Dm) * (H * Dh) ** (-0.5)), 'seg_len': seg}
    _A_in = _A_setup()

    def _B_setup():
        B, S, D, F = (1, 2048, 512, 1376)
        return {'x': _w((lambda *s: torch.randn(*s, dtype=torch.bfloat16) * 0.1)(B, S, D)), 'w_gate': _w((lambda *s: torch.randn(*s, dtype=torch.bfloat16) * 0.4)(D, F) * D ** (-0.5)), 'w_up': _w((lambda *s: torch.randn(*s, dtype=torch.bfloat16) * 0.4)(D, F) * D ** (-0.5)), 'w_down': _w((lambda *s: torch.randn(*s, dtype=torch.bfloat16) * 0.4)(F, D) * F ** (-0.5))}
    _B_in = _B_setup()
    return {'A_x': _A_in['x'], 'A_mem0': _A_in['mem0'], 'A_Wq': _A_in['Wq'], 'A_Wk': _A_in['Wk'], 'A_Wv': _A_in['Wv'], 'A_Wo': _A_in['Wo'], 'A_seg_len': _A_in['seg_len'], 'B_x': _B_in['x'], 'B_w_gate': _B_in['w_gate'], 'B_w_up': _B_in['w_up'], 'B_w_down': _B_in['w_down']}

def reference(A_x, A_mem0, A_Wq, A_Wk, A_Wv, A_Wo, A_seg_len, B_x, B_w_gate, B_w_up, B_w_down):

    def _A_ref(x, mem0, Wq, Wk, Wv, Wo, seg_len):
        B, S, Dm = x.shape
        H, Dh = (Wq.shape[1], Wq.shape[2])
        M = mem0.shape[1]
        scale = Dh ** (-0.5)
        n_seg = S // seg_len
        L = M + seg_len
        idx = torch.arange(L)
        mask = (idx[:, None] < M) | (idx[:, None] >= idx[None, :])
        mem = mem0
        outs = []
        for s in range(n_seg):
            xs = x[:, s * seg_len:(s + 1) * seg_len, :].clone()
            h = torch.concatenate([mem, xs], axis=1)
            q = torch.einsum('btd,dhe->bhte', h, Wq)
            k = torch.einsum('btd,dhe->bhte', h, Wk)
            v = torch.einsum('btd,dhe->bhte', h, Wv)
            scores = torch.einsum('bhqe,bhke->bhqk', q, k) * scale
            scores = torch.where(mask[None, None], scores, -1000000000.0)
            p = _softmax(scores, axis=-1)
            o = torch.einsum('bhqk,bhke->bhqe', p, v)
            o = torch.einsum('bhte,hed->btd', o, Wo)
            mem = o[:, :M, :].clone()
            outs.append(o[:, M:, :])
        return torch.concatenate(outs, axis=1)

    def _B_ref(x, w_gate, w_up, w_down):
        g = torch.einsum('bsd,df->bsf', x, w_gate)
        u = torch.einsum('bsd,df->bsf', x, w_up)
        h = g * u
        return torch.einsum('bsf,fd->bsd', h, w_down)
    x = A_x
    xn = _layernorm(x, axis=-1)
    s = _A_ref(xn, A_mem0, A_Wq, A_Wk, A_Wv, A_Wo, A_seg_len)
    g = _silu(_B_ref(xn, B_w_gate, B_w_up, B_w_down))
    return x + s * g
```

```python
import re


def v(i, n=1):
    return f"v{i}" if n == 1 else f"v[{i}:{i + n - 1}]"


def a(i, n=1):
    return f"a{i}" if n == 1 else f"a[{i}:{i + n - 1}]"


def s(i, n=1):
    return f"s{i}" if n == 1 else f"s[{i}:{i + n - 1}]"


def r(i, n=1):
    if i < 256:
        assert i + n <= 256
        return v(i, n)
    return a(i - 256, n)


_REG = re.compile(r"^(-|\|)?(abs\()?([vas])(\d+|\[(\d+):(\d+)\])\)?\|?$")
TRANS = ("v_exp_f32", "v_log_f32", "v_rcp_f32", "v_rsq_f32", "v_sqrt_f32", "v_sin_f32", "v_cos_f32")


def regs_of(tok):
    tok = tok.strip()
    if tok in ("vcc", "exec", "m0", "scc"):
        return {(tok, 0)}
    if tok in ("vcc_lo", "vcc_hi"):
        return {("vcc", 0)}
    if tok in ("exec_lo", "exec_hi"):
        return {("exec", 0)}
    m = _REG.match(tok)
    if not m:
        return set()
    k = m.group(3)
    if m.group(5) is not None:
        return {(k, i) for i in range(int(m.group(5)), int(m.group(6)) + 1)}
    return {(k, int(m.group(4)))}


def split_ops(txt):
    out, depth, cur = [], 0, ""
    for ch in txt:
        if ch in "([":
            depth += 1
        if ch in ")]":
            depth -= 1
        if ch == "," and depth == 0:
            out.append(cur.strip())
            cur = ""
        else:
            cur += ch
    if cur.strip():
        out.append(cur.strip())
    return out


class Inst:
    def __init__(self, text):
        self.text = text.strip()
        body = self.text.split(";")[0].strip()
        parts = body.split(None, 1)
        self.op = op = parts[0]
        rest = parts[1] if len(parts) > 1 else ""
        ops = split_ops(rest)
        self.mods = []
        if ops:
            last = ops[-1].split()
            ops[-1] = last[0]
            self.mods = last[1:]
        self.ops = ops
        self.is_mfma = op.startswith("v_mfma") or op.startswith("v_smfmac")
        self.is_valu = op.startswith("v_") and not self.is_mfma
        self.is_trans = op.split("_e")[0] in TRANS or op in TRANS
        self.is_vmem = op.startswith("buffer_") or op.startswith("global_")
        self.is_ds = op.startswith("ds_")
        self.is_salu = op.startswith("s_")
        self.is_dpp = "_dpp" in op or any(m.startswith(("quad_perm", "row_", "wave_")) for m in self.mods)
        self.is_permlane = op.startswith("v_permlane")
        self.is_readlane = op.startswith(("v_readlane", "v_readfirstlane"))
        self.lds_dma = self.is_vmem and ("lds" in self.mods or "load_lds" in op)
        self.states = 1
        if op == "s_nop":
            self.states = int(ops[0], 0) + 1
        R = [regs_of(o) for o in ops]
        self.W, self.Rd = set(), set()
        self.srcC = set()
        self.srcAB = set()
        self.asyncW = set()
        self.store_data = set()
        self.target = None
        if self.is_mfma:
            self.W = R[0]
            if op.startswith("v_smfmac"):
                self.srcC = set(R[0])
                self.srcAB = R[1] | R[2] | R[3]
            else:
                self.srcC = R[3]
                self.srcAB = R[1] | R[2]
            self.Rd = self.srcC | self.srcAB
            self.passes = 8 if "32x32" in op else 4
        elif self.is_valu:
            if op == "v_nop":
                pass
            elif self.is_permlane and "swap" in op:
                self.W = R[0] | R[1]
                self.Rd = R[0] | R[1]
            else:
                self.W = set(R[0])
                start = 1
                if op.startswith(("v_add_co", "v_sub_co", "v_addc_co", "v_subb_co", "v_subrev_co", "v_mad_u64", "v_div_scale")):
                    self.W |= R[1]
                    start = 2
                for x in R[start:]:
                    self.Rd |= x
                if op.startswith(("v_fmac", "v_dot2c", "v_pk_fmac", "v_writelane")):
                    self.Rd |= R[0]
                if op.startswith("v_cmpx"):
                    raise ValueError("v_cmpx not supported")
        elif self.is_ds:
            if op.startswith(("ds_read", "ds_bpermute", "ds_permute", "ds_swizzle")) or "_rtn" in op:
                self.asyncW = set(R[0])
                for x in R[1:]:
                    self.Rd |= x
            else:
                for x in R:
                    self.Rd |= x
        elif self.is_vmem:
            if op in ("buffer_wbl2", "buffer_inv"):
                pass
            elif self.lds_dma:
                for x in R:
                    self.Rd |= x
                self.Rd |= {("m0", 0)}
            elif "_load" in op:
                self.asyncW = set(R[0])
                for x in R[1:]:
                    self.Rd |= x
            elif "atomic" in op:
                for x in R:
                    self.Rd |= x
                if "sc0" in self.mods:
                    self.asyncW = set(R[0])
            else:
                for x in R:
                    self.Rd |= x
                if op.endswith(("x3", "x4")):
                    self.store_data = set(R[0]) if op.startswith("buffer") else set(R[1])
        elif self.is_salu:
            if op.startswith(("s_cbranch", "s_branch")):
                self.target = ops[0]
            elif op.startswith(("s_cmp", "s_bitcmp", "s_waitcnt", "s_nop", "s_barrier", "s_endpgm", "s_sleep", "s_setprio", "s_setreg")):
                for x in R:
                    self.Rd |= x
            else:
                if R:
                    self.W = set(R[0])
                for x in R[1:]:
                    self.Rd |= x
                if "saveexec" in op:
                    self.W |= {("exec", 0)}


def _vec(x):
    return {q for q in x if q[0] in ("v", "a")}


def _sc(x):
    return {q for q in x if q[0] in ("s", "vcc")}


def need(p, c):
    n = 0
    if p.is_valu:
        wv = _vec(p.W)
        ws = _sc(p.W)
        if wv:
            if c.is_mfma and (wv & c.Rd):
                n = max(n, 2)
            if c.is_valu and (wv & c.Rd):
                if c.is_permlane or c.is_dpp:
                    n = max(n, 2)
                if c.is_readlane:
                    n = max(n, 1)
                if p.is_trans and not c.is_trans:
                    n = max(n, 1)
            if p.is_trans and (c.is_ds or c.is_vmem) and (wv & c.Rd):
                n = max(n, 1)
        if ws:
            rd = set(c.Rd)
            if c.is_valu and c.op.startswith(("v_cndmask", "v_addc", "v_subb")) and len(c.ops) < 4:
                rd |= {("vcc", 0)}
            if c.is_valu and (ws & rd):
                n = max(n, 4 if c.op.startswith(("v_readlane", "v_writelane")) else 2)
            if c.is_vmem and (ws & rd):
                n = max(n, 5)
    if p.is_mfma:
        P = p.passes
        if c.is_mfma:
            if p.W & c.srcAB:
                n = max(n, P + 4)
            if p.W & c.srcC:
                if not (p.W == c.srcC and c.op == p.op):
                    n = max(n, P + 2)
            elif p.W & c.W and c.passes != P:
                n = max(n, P + 4)
        elif c.is_valu:
            if p.W & (c.Rd | c.W):
                n = max(n, P + 4)
            if p.srcC & c.W:
                n = max(n, P - 1)
        elif c.is_ds or c.is_vmem:
            if p.W & (c.Rd | c.asyncW):
                n = max(n, P + 4)
    if p.store_data and c.is_valu and (p.store_data & c.W):
        n = max(n, 2)
    if p.store_data and c.is_mfma and (p.store_data & c.W):
        n = max(n, 2)
    if p.is_salu and ("m0", 0) in p.W and c.lds_dma:
        n = max(n, 1)
    return n


class Asm:
    def __init__(self):
        self.items = []
        self.uid = 0
        self.timed = True

    def I(self, text):
        for t in text.strip().split("\n"):
            t = t.strip()
            if not t or t.startswith(";"):
                continue
            if t.endswith(":"):
                self.label(t[:-1])
            else:
                self.items.append(("i", Inst(t)))

    __call__ = I

    def label(self, name):
        self.items.append(("l", name))

    def raw(self, text):
        self.items.append(("t", text))

    def newlabel(self, base="L"):
        self.uid += 1
        return f"{base}_{self.uid}"

    def fix_hazards(self, verbose=False):
        MAXD = 12
        total = 0
        while True:
            items = self.items
            labels = {it[1]: k for k, it in enumerate(items) if it[0] == "l"}
            ins = {}
            for k, it in enumerate(items):
                if it[0] != "i":
                    continue
                p = it[1]
                if not (p.is_valu or p.is_mfma or p.store_data or (p.is_salu and ("m0", 0) in p.W)):
                    continue
                lim = p.passes + 4 if p.is_mfma else 5
                stack = [(k, 0, (p.passes - 1) if p.is_mfma else -99)]
                seen = {}
                while stack:
                    j, d, lm = stack.pop()
                    cur = items[j][1] if items[j][0] == "i" else None
                    succ = []
                    if cur is not None and cur.op in ("s_endpgm", "s_setpc_b64"):
                        pass
                    elif cur is not None and cur.op == "s_branch":
                        succ.append(labels[cur.target])
                    else:
                        if j + 1 < len(items):
                            succ.append(j + 1)
                        if cur is not None and cur.target is not None:
                            succ.append(labels[cur.target])
                    for q in succ:
                        if q in seen and seen[q][0] <= d and seen[q][1] <= lm:
                            continue
                        seen[q] = (d, lm)
                        nlm = lm
                        if items[q][0] == "i":
                            c = items[q][1]
                            n = need(p, c)
                            dd = d
                            if c.is_mfma and self.timed:
                                dd = max(d, lm)
                                nlm = dd + c.passes
                            if n > dd:
                                ins[q] = max(ins.get(q, 0), n - d)
                                continue
                            nd = dd + c.states
                        else:
                            nd = d
                        if nd < lim:
                            stack.append((q, nd, nlm))
            if not ins:
                break
            new = []
            last = -100
            for k, it in enumerate(items):
                if k in ins and k - last > MAXD + 2:
                    n = ins[k]
                    total += n
                    if verbose:
                        print("nop", n, "before", it[1].text)
                    new.append(("i", Inst(f"s_nop {n - 1}")))
                    last = k
                new.append(it)
            self.items = new
        return total

    def text(self):
        out = []
        for k, x in self.items:
            if k == "i":
                out.append("    " + x.text)
            elif k == "l":
                out.append(x + ":")
            else:
                out.append(x)
        return "\n".join(out) + "\n"
```

```python
NAME = "recurrent_scan__memory_aug_recurrent_mem_tr__glu_gated_bilinear__prompt"

WS_BYTES = 268435456
WS_FLAGS = 0x0000000
WS_PART = 0x0100000
WS_MEMB = 0x0180000
WS_TRACE = 0x01C0000
WS_XN = 0x0200000
WS_H = 0x0400000
WS_O = 0x1000000
WS_HEAD = 0x2000000
HEAD_STRIDE = 0x200000
SEG_STRIDE = 0x8000
OFF_K = 0
OFF_V = 8192
OFF_KM = 16384
OFF_VM = 16384 + 2048
WS_MEMDUMP = 0x6000000
```

```python
import sys
import math
import struct
from asmdsl import Asm, v, a, s, r
from common import *

OPT = dict(trace=0, roles="H", steps=64, memdump=0)
for arg in sys.argv[2:]:
    k, val = arg.split("=")
    OPT[k] = val if k in ("roles", "prof") else int(val)


def f32bits(x):
    return struct.unpack("<I", struct.pack("<f", x))[0]


A = Asm()

SRD_WS, SRD_DBG, SRD_X, SRD_MEM0, SRD_WQ, SRD_WK, SRD_WV, SRD_WO, SRD_WG, SRD_WU, SRD_WD, SRD_OUT = range(4, 52, 4)
sW, sID, sXCC, sT0, sT1, sT2, sT3, sBUD = 52, 53, 54, 55, 56, 57, 58, 59
DBG_T0, DBG_TW, DBG_ARM, DBG_SLOW, DBG_READY, DBG_ERR = 0, 4, 8, 12, 16, 20


def srd(x):
    return s(x, 4)


def prologue():
    A(f"""
    s_cmp_ge_u32 s2, 256
    s_cbranch_scc1 L_end
    s_load_dwordx2 {s(SRD_X, 2)}, s[0:1], 0
    s_load_dwordx2 {s(SRD_MEM0, 2)}, s[0:1], 8
    s_load_dwordx2 {s(SRD_WQ, 2)}, s[0:1], 16
    s_load_dwordx2 {s(SRD_WK, 2)}, s[0:1], 24
    s_load_dwordx2 {s(SRD_WV, 2)}, s[0:1], 32
    s_load_dwordx2 {s(SRD_WO, 2)}, s[0:1], 40
    s_load_dwordx2 {s(SRD_WG, 2)}, s[0:1], 64
    s_load_dwordx2 {s(SRD_WU, 2)}, s[0:1], 72
    s_load_dwordx2 {s(SRD_WD, 2)}, s[0:1], 80
    s_load_dwordx2 {s(SRD_OUT, 2)}, s[0:1], 88
    s_load_dwordx2 {s(SRD_DBG, 2)}, s[0:1], 96
    s_load_dwordx2 {s(SRD_WS, 2)}, s[0:1], 104
    """)
    sizes = {SRD_WS: WS_BYTES, SRD_DBG: 256, SRD_X: 2048 * 512 * 2, SRD_MEM0: 8 * 512 * 2,
             SRD_WQ: 512 * 4096 * 2, SRD_WK: 512 * 4096 * 2, SRD_WV: 512 * 4096 * 2, SRD_WO: 512 * 4096 * 2,
             SRD_WG: 512 * 1376 * 2, SRD_WU: 512 * 1376 * 2, SRD_WD: 512 * 1376 * 2, SRD_OUT: 2048 * 512 * 2}
    for k, sz in sizes.items():
        A(f"s_mov_b32 s{k + 2}, {sz:#x}")
        A(f"s_mov_b32 s{k + 3}, 0x00020000")
    A(f"""
    v_lshrrev_b32 v1, 6, v0
    v_and_b32 v0, 63, v0
    v_readfirstlane_b32 s{sW}, v1
    s_getreg_b32 s{sXCC}, hwreg(HW_REG_XCC_ID, 0, 4)
    s_mov_b32 s{sBUD}, 0x80000
    v_mov_b32 v2, 0
    s_waitcnt lgkmcnt(0)
    s_cmp_lg_u32 s{sW}, 0
    s_cbranch_scc1 L_ticket_wait
    s_mov_b64 exec, 1
    v_mov_b32 v3, 1
    s_cmp_lg_u32 s{sXCC}, 0
    s_cbranch_scc1 L_ticket_worker
    buffer_atomic_add v3, v2, {srd(SRD_DBG)}, 0 offen offset:{DBG_T0} sc0 sc1
    s_waitcnt vmcnt(0)
    v_readfirstlane_b32 s{sT0}, v3
    s_cmp_lt_u32 s{sT0}, 32
    s_cbranch_scc1 L_ticket_done
    v_mov_b32 v3, 1
L_ticket_worker:
    buffer_atomic_add v3, v2, {srd(SRD_DBG)}, 0 offen offset:{DBG_TW} sc0 sc1
    s_waitcnt vmcnt(0)
    v_readfirstlane_b32 s{sT0}, v3
    s_add_u32 s{sT0}, s{sT0}, 32          ; workers: 32..255
    s_cmp_lt_u32 s{sT0}, 256
    s_cbranch_scc1 L_ticket_done
    s_sub_u32 s{sT0}, 287, s{sT0}
    v_mov_b32 v3, 1
    buffer_atomic_add v3, v2, {srd(SRD_DBG)}, 0 offen offset:{DBG_SLOW} sc0 sc1
    s_waitcnt vmcnt(0)
L_ticket_done:
    v_mov_b32 v3, s{sT0}
    ds_write_b32 v2, v3
    s_mov_b64 exec, -1
    s_waitcnt lgkmcnt(0)
L_ticket_wait:
    s_barrier
    ds_read_b32 v3, v2
    s_waitcnt lgkmcnt(0)
    v_readfirstlane_b32 s{sID}, v3
    s_barrier
    s_cmp_lt_u32 s{sID}, 32
    s_cbranch_scc1 L_head
    s_branch L_end
    """)


H_WT = 0
H_MEMA = 131072
H_SX = H_MEMA
H_OX = H_MEMA + 4096
H_KXL = H_MEMA + 8192
H_VXL = H_KXL + 8192
H_QK = H_VXL + 8192
assert H_QK + 8 * 576 <= 163840
HB = H_MEMA

(cL16, cL4, cIDX, cSEL, cQKW, cQKR, cQTR, cPST, cMST, cOXW, cW16, cW16L, cMA1, cMA2, cMA3, cWT) = range(16)
MA = 16
F0, F1 = 48, 64
AQ, AK, AV = 80, 88, 96
KX, VX = 104, 112
T = 120
sPS = 60
sPL, sMP, sMR, sP0, sP1, sSTEP, sKV = 68, 69, 70, 71, 72, 73, 74
sPAR = 76
sC, sTHR, sKVC = 78, 79, 80
sLK, sLV = 81, 82
sTS = 84

LDS_BLOCKS = [("Q", 0), ("V", 0), ("K", 6), ("K", 7), ("V", 6), ("V", 7), ("O", 3), ("O", 7)]
ALL_BLOCKS = [(m, i) for m in "QKV" for i in range(8)] + [("O", i) for i in range(8)]
REG_BLOCKS = [b for b in ALL_BLOCKS if b not in LDS_BLOCKS]
BLK_REG = {b: 128 + 16 * n for n, b in enumerate(REG_BLOCKS)}
FIFO_OF = {b: (F0, F1)[n & 1] for n, b in enumerate(LDS_BLOCKS)}


def wreg(blk, u):
    base = BLK_REG[blk] if blk in BLK_REG else FIFO_OF[blk]
    return r(base + 8 * u, 8)


def fifo_load(blk):
    n = LDS_BLOCKS.index(blk)
    f = FIFO_OF[blk]
    return [f"ds_read_b128 {v(f + 4 * q, 4)}, {v(cWT)} offset:{n * 4096 + q * 1024}" for q in range(4)]


def sm(mat, slot, u):
    acc = {"Q": AQ, "K": AK, "V": AV}[mat] + 4 * u
    return f"v_smfmac_f32_16x16x64_bf16 {v(acc, 4)}, {v(MA + 4 * slot, 4)}, {wreg((mat, slot), u)}, {v(cIDX)}"


def sm2(mat, slot):
    return [sm(mat, slot, 0), sm(mat, slot, 1)]


def stamp(i):
    if OPT["trace"]:
        A(f"s_memtime {s(sTS + 2 * i, 2)}")


def timeout_check():
    A(f"""
    s_sub_u32 s{sBUD}, s{sBUD}, 1
    s_cbranch_scc1 L_timeout
    """)


def head_setup():
    A("L_head:")
    g, i, t0, t1, t2 = T, T + 1, T + 2, T + 3, T + 4
    lane = T + 5
    A(f"""
    v_mov_b32 {v(lane)}, v0
    v_lshrrev_b32 {v(g)}, 4, {v(lane)}
    v_and_b32 {v(i)}, 15, {v(lane)}
    v_lshlrev_b32 {v(cL4)}, 2, {v(lane)}
    v_lshlrev_b32 {v(t0)}, 4, {v(lane)}
    v_add_u32 {v(cL16)}, {HB}, {v(t0)}
    s_lshl_b32 s{sT0}, s{sW}, 10
    v_add_u32 {v(cW16)}, s{sT0}, {v(t0)}
    v_add_u32 {v(cW16L)}, {HB}, {v(cW16)}
    s_lshl_b32 s{sT0}, s{sW}, 15
    v_add_u32 {v(cWT)}, s{sT0}, {v(t0)}
    """)
    for k, reg in ((1, cMA1), (2, cMA2), (3, cMA3)):
        A(f"""
        s_add_u32 s{sT0}, s{sW}, {k}
        s_and_b32 s{sT0}, s{sT0}, 3
        s_lshl_b32 s{sT0}, s{sT0}, 10
        v_add_u32 {v(reg)}, s{sT0}, {v(cL16)}
        """)
    A(f"""
    s_mov_b32 s{sPAR}, 0xaaaaaaaa
    s_mov_b32 s{sPAR + 1}, 0xaaaaaaaa
    v_mov_b32 {v(t1)}, 0x4444
    v_mov_b32 {v(t2)}, 0xeeee
    v_cndmask_b32 {v(cIDX)}, {v(t1)}, {v(t2)}, {s(sPAR, 2)}
    s_mov_b32 vcc_lo, 0xf0f0f0f0
    s_mov_b32 vcc_hi, 0xf0f0f0f0
    v_mov_b32 {v(t1)}, 0x3f80
    v_mov_b32 {v(t2)}, 0x3f800000
    v_cndmask_b32 {v(cSEL)}, {v(t1)}, {v(t2)}, vcc
    v_mul_u32_u24 {v(t1)}, 1152, {v(g)}
    v_lshl_add_u32 {v(t1)}, {v(i)}, 2, {v(t1)}
    s_lshl_b32 s{sT0}, s{sW}, 6
    s_add_u32 s{sT1}, s{sT0}, {H_QK}
    v_add_u32 {v(cQKW)}, s{sT1}, {v(t1)}
    v_lshrrev_b32 {v(t1)}, 1, {v(i)}
    v_mul_u32_u24 {v(t1)}, 576, {v(t1)}
    v_lshl_add_u32 {v(t1)}, {v(g)}, 4, {v(t1)}
    v_add_u32 {v(cQKR)}, {H_QK}, {v(t1)}
    v_add_u32 {v(cQTR)}, s{sT0}, {v(cQKR)}
    ; cPST = g*2048 + h*64 + i*4 + w*8192
    v_lshlrev_b32 {v(t1)}, 11, {v(g)}
    v_lshl_add_u32 {v(t1)}, {v(i)}, 2, {v(t1)}
    s_lshl_b32 s{sT0}, s{sID}, 6
    s_lshl_b32 s{sT1}, s{sW}, 13
    s_add_u32 s{sT0}, s{sT0}, s{sT1}
    v_add_u32 {v(cPST)}, s{sT0}, {v(t1)}
    ; cMST = t*1024 + b*256 + w*64 + (g&1)*32 + ((i>>1)&1)*16 + (i>>2)*4 + (i&1)*2 ; (t,b)=(h>>2,h&3) -> h*256
    v_and_b32 {v(t1)}, 1, {v(g)}
    v_lshlrev_b32 {v(t1)}, 5, {v(t1)}
    v_and_b32 {v(t2)}, 2, {v(i)}
    v_lshl_add_u32 {v(t1)}, {v(t2)}, 3, {v(t1)}
    v_and_b32 {v(t2)}, 12, {v(i)}
    v_add_u32 {v(t1)}, {v(t2)}, {v(t1)}
    v_and_b32 {v(t2)}, 1, {v(i)}
    v_lshl_add_u32 {v(t1)}, {v(t2)}, 1, {v(t1)}
    s_lshl_b32 s{sT0}, s{sID}, 8
    s_lshl_b32 s{sT1}, s{sW}, 6
    s_add_u32 s{sT0}, s{sT0}, s{sT1}
    v_add_u32 {v(t1)}, s{sT0}, {v(t1)}
    v_and_b32 {v(t2)}, 2, {v(g)}
    v_lshlrev_b32 {v(t2)}, 29, {v(t2)}
    v_add_u32 {v(cMST)}, {v(t2)}, {v(t1)}
    s_lshr_b32 s{sT0}, s{sW}, 1
    s_lshl_b32 s{sT0}, s{sT0}, 10
    s_and_b32 s{sT1}, s{sW}, 1
    s_lshl_b32 s{sT1}, s{sT1}, 3
    s_add_u32 s{sT0}, s{sT0}, s{sT1}
    s_add_u32 s{sT0}, s{sT0}, {H_OX}
    v_add_u32 {v(cOXW)}, s{sT0}, {v(t0)}
    """)
    for c in range(8):
        A(f"s_mov_b32 s{sPS + c}, {WS_PART + c * 32768:#x}")
    A(f"""
    s_lshl_b32 s{sT0}, s{sID}, 13
    s_lshl_b32 s{sT1}, s{sW}, 11
    s_add_u32 s{sT0}, s{sT0}, s{sT1}
    s_add_u32 s{sPL}, s{sT0}, {WS_PART:#x}
    s_mov_b32 s{sMP}, {WS_MEMB + 8192:#x}
    s_mov_b32 s{sMR}, {WS_MEMB:#x}
    s_mov_b32 s{sP0}, {WS_MEMB:#x}
    s_mov_b32 s{sP1}, {WS_MEMB + 4096:#x}
    s_mov_b32 s{sSTEP}, 0
    s_lshl_b32 s{sT0}, s{sID}, 21
    s_add_u32 s{sKV}, s{sT0}, {WS_HEAD:#x}
    s_mov_b32 s{sKVC}, s{sKV}
    s_mov_b32 s{sC}, {f32bits(128 ** -0.5 * math.log2(math.e)):#x}
    s_mov_b32 s{sTHR}, {f32bits(16.0):#x}
    s_lshl_b32 s{sT0}, s{sW}, 11
    s_add_u32 s{sLK}, s{sT0}, {H_KXL}
    s_add_u32 s{sLV}, s{sT0}, {H_VXL}
    """)
    m1 = AQ
    A(f"""
    v_mov_b32 {v(m1)}, -1
    v_mov_b32 {v(m1 + 1)}, -1
    v_mov_b32 {v(m1 + 2)}, -1
    v_mov_b32 {v(m1 + 3)}, -1
    v_and_b32 {v(t1)}, 1, {v(g)}
    v_lshlrev_b32 {v(t1)}, 10, {v(t1)}
    v_lshl_add_u32 {v(t1)}, {v(i)}, 1, {v(t1)}
    s_and_b32 s{sT0}, s{sID}, 3
    s_lshl_b32 s{sT0}, s{sT0}, 8
    s_lshr_b32 s{sT1}, s{sID}, 2
    s_lshl_b32 s{sT1}, s{sT1}, 5
    s_add_u32 s{sT0}, s{sT0}, s{sT1}
    s_lshl_b32 s{sT1}, s{sW}, 11
    s_add_u32 s{sT0}, s{sT0}, s{sT1}
    buffer_load_ushort {v(t2)}, {v(t1)}, {srd(SRD_MEM0)}, s{sT0} offen
    s_xor_b32 s{sT1}, s{sPL}, 0x40000
    buffer_store_dwordx4 {v(m1, 4)}, {v(t0)}, {srd(SRD_WS)}, s{sPL} offen sc1
    buffer_store_dwordx4 {v(m1, 4)}, {v(t0)}, {srd(SRD_WS)}, s{sPL} offen offset:1024 sc1
    buffer_store_dwordx4 {v(m1, 4)}, {v(t0)}, {srd(SRD_WS)}, s{sT1} offen sc1
    buffer_store_dwordx4 {v(m1, 4)}, {v(t0)}, {srd(SRD_WS)}, s{sT1} offen offset:1024 sc1
    buffer_store_short {v(m1)}, {v(cMST)}, {srd(SRD_WS)}, s{sMP} offen sc1
    s_waitcnt vmcnt(5)
    v_min_u32 {v(t2)}, 0xfffe, {v(t2)}
    buffer_store_short {v(t2)}, {v(cMST)}, {srd(SRD_WS)}, s{sMR} offen sc1
    s_waitcnt vmcnt(0)
    s_mov_b64 exec, 1
    v_mov_b32 {v(t1)}, 0
    v_mov_b32 {v(t2)}, 1
    buffer_atomic_add {v(t2)}, {v(t1)}, {srd(SRD_DBG)}, 0 offen offset:{DBG_ARM} sc1
    s_mov_b64 exec, -1
    """)
    vq, vo, tr0, tr1 = AK, AK + 1, AK + 2, AK + 3
    A(f"""
    v_lshrrev_b32 {v(t1)}, 5, {v(lane)}
    v_lshlrev_b32 {v(t1)}, 1, {v(t1)}
    v_and_b32 {v(t2)}, 3, {v(lane)}
    v_xor_b32 {v(t1)}, {v(t1)}, {v(t2)}
    v_lshlrev_b32 {v(t1)}, 4, {v(t1)}
    v_lshrrev_b32 {v(t2)}, 2, {v(lane)}
    v_lshl_add_u32 {v(vq)}, {v(t2)}, 13, {v(t1)}
    v_and_b32 {v(t2)}, 3, {v(t2)}
    v_lshl_add_u32 {v(t2)}, {v(g)}, 4, {v(t2)}
    v_lshl_add_u32 {v(vo)}, {v(t2)}, 10, {v(t1)}
    v_lshrrev_b32 {v(t1)}, 2, {v(i)}
    v_lshl_add_u32 {v(t1)}, {v(g)}, 3, {v(t1)}
    v_lshlrev_b32 {v(t1)}, 6, {v(t1)}
    v_and_b32 {v(t2)}, 3, {v(i)}
    v_lshl_add_u32 {v(t1)}, {v(t2)}, 3, {v(t1)}
    v_and_b32 {v(t2)}, 1, {v(g)}
    v_lshl_add_u32 {v(t1)}, {v(t2)}, 5, {v(t1)}
    s_lshl_b32 s{sT3}, s{sW}, 15
    v_add_u32 {v(tr0)}, s{sT3}, {v(t1)}
    v_xor_b32 {v(tr1)}, 32, {v(tr0)}
    """)
    sQB = [84, 85, 86, 87]
    sOB = 88
    for tau in range(4):
        A(f"""
        s_add_u32 s{sT0}, s{sW}, {tau}
        s_and_b32 s{sT0}, s{sT0}, 3
        s_lshl_b32 s{sT0}, s{sT0}, 17
        s_lshl_b32 s{sT1}, s{sID}, 8
        s_add_u32 s{sT0}, s{sT0}, s{sT1}
        s_lshl_b32 s{sT1}, s{sW}, 6
        s_add_u32 s{sQB[tau]}, s{sT0}, s{sT1}
        """)
    A(f"""
    s_lshl_b32 s{sT0}, s{sID}, 17
    s_lshl_b32 s{sT1}, s{sW}, 8
    s_add_u32 s{sOB}, s{sT0}, s{sT1}
    """)
    order = REG_BLOCKS + LDS_BLOCKS

    def dma(n):
        blk = order[n]
        slot = n % 8
        for m in range(4):
            A(f"s_add_u32 m0, s{sT3}, {slot * 4096 + m * 1024}")
            if blk[0] == "O":
                t2_, cp = blk[1] >> 2, blk[1] & 3
                A(f"s_add_u32 s{sT0}, s{sOB}, {(64 * t2_ + 4 * m) * 1024 + cp * 64}")
                A(f"buffer_load_dwordx4 {v(vo)}, {srd(SRD_WO)}, s{sT0} offen lds")
            else:
                sr = {"Q": SRD_WQ, "K": SRD_WK, "V": SRD_WV}[blk[0]]
                tau, half = blk[1] & 3, blk[1] >> 2
                A(f"s_add_u32 s{sT0}, s{sQB[tau]}, {(128 * m + 64 * half) * 8192}")
                A(f"buffer_load_dwordx4 {v(vq)}, {srd(sr)}, s{sT0} offen lds")

    for n in range(8):
        dma(n)
    for n in range(32):
        blk = order[n]
        slot = n % 8
        issued = min(32, n + 8)
        A(f"s_waitcnt vmcnt({4 * (issued - n - 1)})")
        dst = BLK_REG[blk] if blk in BLK_REG else F0
        for u in range(2):
            for j2 in range(4):
                off = slot * 4096 + (32 * (j2 >> 1) + 4 * (j2 & 1)) * 64
                A(f"ds_read_b64_tr_b16 {r(dst + 8 * u + 2 * j2, 2)}, {v(tr1 if u else tr0)} offset:{off}")
        A("s_waitcnt lgkmcnt(0)")
        if n + 8 < 32:
            dma(n + 8)
        if blk not in BLK_REG:
            for q in range(4):
                A(f"ds_write_b128 {v(cWT)}, {v(F0 + 4 * q, 4)} offset:{slot * 4096 + q * 1024}")
            A("s_waitcnt lgkmcnt(0)")
    A(f"""
    v_mov_b32 {v(t1)}, 0
L_arm_wait:
    buffer_load_dwordx2 {v(T + 6, 2)}, {v(t1)}, {srd(SRD_DBG)}, 0 offen offset:{DBG_ARM} sc1
    s_waitcnt vmcnt(0)
    v_readfirstlane_b32 s{sT0}, {v(T + 6)}
    v_readfirstlane_b32 s{sT1}, {v(T + 7)}
    s_cmp_ge_u32 s{sT0}, 128
    s_cbranch_scc1 L_armed
    """)
    timeout_check()
    A("""
    s_sleep 4
    s_branch L_arm_wait
L_armed:
    """)


def kv_dma():
    out = []
    for (base, off) in ((sLK, OFF_K), (sLV, OFF_V)):
        for k in range(2):
            out.append(f"s_add_u32 m0, s{base}, {k * 1024}")
            out.append(f"s_add_u32 s{sT0}, s{sKV}, {off + k * 4096}")
            out.append(f"buffer_load_dwordx4 {v(cW16)}, {srd(SRD_WS)}, s{sT0} offen sc1 lds")
    out.append(f"s_add_u32 s{sKV}, s{sKV}, {SEG_STRIDE}")
    return out


def kv_read(tmp):
    return [
        f"s_lshl_b32 s{sT0}, s{sW}, 10",
        f"v_add_u32 {v(tmp)}, s{sT0}, {v(cW16L)}",
        f"ds_read_b128 {v(KX, 4)}, {v(tmp)} offset:{H_KXL - HB}",
        f"ds_read_b128 {v(KX + 4, 4)}, {v(tmp)} offset:{H_KXL - HB + 1024}",
        f"ds_read_b128 {v(VX, 4)}, {v(tmp)} offset:{H_VXL - HB}",
        f"ds_read_b128 {v(VX + 4, 4)}, {v(tmp)} offset:{H_VXL - HB + 1024}",
    ]


def emit(lst):
    for x in lst:
        A(x)


def head_loop(sc, tag):
    L = lambda n: f"L_{tag}_{n}"
    ws = srd(SRD_WS)
    emit(kv_dma())
    A("s_waitcnt vmcnt(0)")
    emit(kv_read(T))
    emit(fifo_load(("Q", 0)) + fifo_load(("V", 0)))
    for k in range(24):
        A(f"v_mov_b32 {v(AQ + k)}, 0")
    A("s_waitcnt lgkmcnt(0)")
    if OPT["trace"] or True:
        A(f"s_memtime {s(100, 2)}")
        A("s_waitcnt lgkmcnt(0)")
        A("s_mov_b32 s75, s100")
    A.label(L("loop"))
    stamp(0)
    A.label(L("p1"))
    A(f"""
    buffer_load_dwordx4 {v(MA, 4)}, {v(cW16)}, {ws}, s{sP0} offen sc1
    buffer_load_dwordx4 {v(MA + 16, 4)}, {v(cW16)}, {ws}, s{sP1} offen sc1
    s_waitcnt vmcnt(1)
    v_max3_u32 {v(T)}, {v(MA)}, {v(MA + 1)}, {v(MA + 2)}
    v_max_u32 {v(T)}, {v(T)}, {v(MA + 3)}
    v_cmp_eq_u32 vcc, -1, {v(T)}
    s_cbranch_vccz {L("p1ok")}
    """)
    timeout_check()
    A(f"s_branch {L('p1')}")
    A.label(L("p1ok"))
    stamp(1)
    A(f"ds_write_b128 {v(cW16L)}, {v(MA, 4)} offset:{H_MEMA - HB}")
    emit(sm2("Q", 0))
    A("s_waitcnt lgkmcnt(0)")
    A("s_barrier")
    for k, reg in ((1, cMA1), (2, cMA2), (3, cMA3)):
        A(f"ds_read_b128 {v(MA + 4 * k, 4)}, {v(reg)} offset:{H_MEMA - HB}")
    emit(sm2("V", 0))
    emit(fifo_load(("K", 6)))
    emit(sm2("K", 0))
    emit(fifo_load(("K", 7)))
    A("s_waitcnt vmcnt(0)")
    A.label(L("p2"))
    A(f"""
    v_max3_u32 {v(T)}, {v(MA + 16)}, {v(MA + 17)}, {v(MA + 18)}
    v_max_u32 {v(T)}, {v(T)}, {v(MA + 19)}
    v_cmp_eq_u32 vcc, -1, {v(T)}
    s_cbranch_vccz {L("p2ok")}
    """)
    timeout_check()
    A(f"""
    buffer_load_dwordx4 {v(MA + 16, 4)}, {v(cW16)}, {ws}, s{sP1} offen sc1
    s_waitcnt vmcnt(0)
    s_branch {L('p2')}
    """)
    A.label(L("p2ok"))
    A(f"ds_write_b128 {v(cW16L)}, {v(MA + 16, 4)} offset:{H_MEMA - HB + 4096}")
    if OPT["memdump"]:
        A(f"""
        s_cmp_lg_u32 s{sID}, 0
        s_cbranch_scc1 {L("nodump")}
        s_lshl_b32 s{sT0}, s{sSTEP}, 13
        s_add_u32 s{sT0}, s{sT0}, {WS_MEMDUMP:#x}
        buffer_store_dwordx4 {v(MA, 4)}, {v(cW16)}, {ws}, s{sT0} offen
        s_add_u32 s{sT0}, s{sT0}, 4096
        buffer_store_dwordx4 {v(MA + 16, 4)}, {v(cW16)}, {ws}, s{sT0} offen
        {L("nodump")}:
        """)
    A("s_waitcnt lgkmcnt(9)")
    emit(sm2("Q", 1))
    dm = kv_dma()
    emit(dm[0:3])
    emit(sm2("Q", 2))
    emit(dm[3:6])
    emit(sm2("Q", 3))
    emit(dm[6:9])
    A("s_waitcnt lgkmcnt(0)")
    A("s_barrier")
    for k, reg in ((1, cMA1), (2, cMA2), (3, cMA3)):
        A(f"ds_read_b128 {v(MA + 16 + 4 * k, 4)}, {v(reg)} offset:{H_MEMA - HB + 4096}")
    emit(sm2("Q", 4))
    emit(dm[9:])
    emit(sm2("V", 4))
    emit(sm2("K", 4))
    A("s_waitcnt lgkmcnt(2)")
    emit(sm2("Q", 5))
    A("s_waitcnt lgkmcnt(1)")
    emit(sm2("Q", 6))
    A("s_waitcnt lgkmcnt(0)")
    emit(sm2("Q", 7))
    stamp(2)
    emit(sm2("K", 1))
    emit(sm2("K", 2))
    A(f"""
    v_add_f32 {v(T)}, {v(AQ)}, {v(AQ + 1)}
    v_add_f32 {v(T + 1)}, {v(AQ + 2)}, {v(AQ + 3)}
    v_add_f32 {v(T + 2)}, {v(AQ + 4)}, {v(AQ + 5)}
    v_add_f32 {v(T + 3)}, {v(AQ + 6)}, {v(AQ + 7)}
    {sm("K", 3, 0)}
    v_mul_f32 {v(T)}, s{sC}, {v(T)}
    v_mul_f32 {v(T + 1)}, s{sC}, {v(T + 1)}
    v_mul_f32 {v(T + 2)}, s{sC}, {v(T + 2)}
    v_mul_f32 {v(T + 3)}, s{sC}, {v(T + 3)}
    {sm("K", 3, 1)}
    v_cvt_pk_bf16_f32 {v(T)}, {v(T)}, {v(T + 2)}
    v_cvt_pk_bf16_f32 {v(T + 1)}, {v(T + 1)}, {v(T + 3)}
    ds_write2_b32 {v(cQKW)}, {v(T)}, {v(T + 1)} offset0:0 offset1:144
    ds_read_b128 {v(T + 4, 4)}, {v(cQTR)}
    {sm("K", 5, 0)}
    {sm("K", 5, 1)}
    {sm("K", 6, 0)}
    {sm("K", 6, 1)}
    s_waitcnt lgkmcnt(0)
    v_mfma_f32_16x16x32_bf16 {v(AQ, 4)}, {v(KX, 4)}, {v(T + 4, 4)}, 0
    v_mfma_f32_16x16x32_bf16 {v(AQ + 4, 4)}, {v(KX + 4, 4)}, {v(T + 4, 4)}, 0
    {sm("K", 7, 0)}
    {sm("K", 7, 1)}
    """)
    emit(fifo_load(("V", 6)))
    emit(fifo_load(("V", 7)))
    stamp(3)
    for k in range(4):
        A(f"v_cndmask_b32 {v(AQ + k)}, {v(AQ + k)}, {v(AQ + 4 + k)}, {s(sPAR, 2)}")
    A(f"ds_write_b128 {v(cW16L)}, {v(AQ, 4)} offset:{H_SX - HB}")
    A(f"""
    v_add_f32 {v(T)}, {v(AK)}, {v(AK + 1)}
    v_add_f32 {v(T + 1)}, {v(AK + 2)}, {v(AK + 3)}
    v_add_f32 {v(T + 2)}, {v(AK + 4)}, {v(AK + 5)}
    v_add_f32 {v(T + 3)}, {v(AK + 6)}, {v(AK + 7)}
    v_cvt_pk_bf16_f32 {v(T)}, {v(T)}, {v(T + 2)}
    v_cvt_pk_bf16_f32 {v(T + 1)}, {v(T + 1)}, {v(T + 3)}
    ds_write2_b32 {v(cQKW)}, {v(T)}, {v(T + 1)} offset0:64 offset1:208
    """)
    emit(sm2("V", 1))
    emit(sm2("V", 2))
    A("s_waitcnt lgkmcnt(0)")
    A("s_barrier")
    stamp(4)
    KF = [AK, AK + 4, KX, KX + 4]
    QF = [MA + 0, MA + 16, MA + 4, MA + 8]
    SXP = [AQ, AQ + 4, T, T + 4]
    for ks in range(4):
        A(f"ds_read_b128 {v(KF[ks], 4)}, {v(cQKR)} offset:{256 + 64 * ks}")
        A(f"ds_read_b128 {v(QF[ks], 4)}, {v(cQKR)} offset:{64 * ks}")
    for k in range(4):
        A(f"ds_read_b128 {v(SXP[k], 4)}, {v(cL16)} offset:{H_SX - HB + 1024 * k}")
    emit(sm2("V", 3))
    emit(sm2("V", 5))
    SMM = MA + 12
    for ks in range(4):
        A(f"s_waitcnt lgkmcnt({10 - 2 * ks})")
        c = "0" if ks == 0 else v(SMM, 4)
        A(f"v_mfma_f32_16x16x32_bf16 {v(SMM, 4)}, {v(KF[ks], 4)}, {v(QF[ks], 4)}, {c}")
    emit(sm2("V", 6))
    A("s_waitcnt lgkmcnt(0)")
    X = AQ
    for k in range(4):
        A(f"v_add_f32 {v(X + k)}, {v(AQ + k)}, {v(AQ + 4 + k)}")
        A(f"v_add_f32 {v(T + k)}, {v(T + k)}, {v(T + 4 + k)}")
    emit(sm2("V", 7))
    for k in range(4):
        A(f"v_add_f32 {v(X + k)}, {v(X + k)}, {v(T + k)}")
    emit(fifo_load(("O", 3)))
    emit(fifo_load(("O", 7)))
    KMF = MA + 20
    A(f"ds_read_b128 {v(KMF, 4)}, {v(cQTR)} offset:256")
    A(f"""
    v_max3_f32 {v(T)}, |{v(X)}|, |{v(X + 1)}|, |{v(X + 2)}|
    v_max3_f32 {v(T)}, {v(T)}, |{v(X + 3)}|, |{v(SMM)}|
    v_max_f32 {v(T)}, {v(T)}, |{v(SMM + 2)}|
    v_cmp_nge_f32 vcc, s{sTHR}, {v(T)}
    s_cbranch_vccnz {L("slow")}
    {L("soft")}:
    """)
    PX = AQ + 4
    PM = T
    ONES = T + 4
    VM = AK
    PV = [MA + 0, MA + 4]
    LA = MA + 8
    for k in range(4):
        A(f"v_exp_f32 {v(X + k)}, {v(X + k)}")
    A(f"""
    v_exp_f32 {v(SMM)}, {v(SMM)}
    v_exp_f32 {v(SMM + 2)}, {v(SMM + 2)}
    v_cvt_pk_bf16_f32 {v(X)}, {v(X)}, {v(X + 1)}
    v_cvt_pk_bf16_f32 {v(X + 1)}, {v(X + 2)}, {v(X + 3)}
    v_mov_b32 {v(ONES)}, 0x3f803f80
    v_mov_b32 {v(ONES + 1)}, 0x3f803f80
    v_mov_b32_dpp {v(PX)}, {v(X)} quad_perm:[0,0,2,2] row_mask:0xf bank_mask:0xf
    v_mov_b32_dpp {v(PX + 1)}, {v(X + 1)} quad_perm:[0,0,2,2] row_mask:0xf bank_mask:0xf
    v_mov_b32_dpp {v(PX + 2)}, {v(X)} quad_perm:[1,1,3,3] row_mask:0xf bank_mask:0xf
    v_mov_b32_dpp {v(PX + 3)}, {v(X + 1)} quad_perm:[1,1,3,3] row_mask:0xf bank_mask:0xf
    v_mov_b32 {v(ONES + 2)}, 0x3f803f80
    v_mov_b32 {v(ONES + 3)}, 0x3f803f80
    v_cvt_pk_bf16_f32 {v(PM)}, {v(SMM)}, {v(SMM + 2)}
    v_mov_b32 {v(PM + 1)}, 0
    v_mfma_f32_16x16x32_bf16 {v(LA, 4)}, {v(ONES, 4)}, {v(PX, 4)}, 0
    v_mov_b32 {v(PM + 2)}, 0
    v_mov_b32 {v(PM + 3)}, {v(PM)}
    v_mfma_f32_16x16x16_bf16 {v(LA, 4)}, {v(ONES, 2)}, {v(PM, 2)}, {v(LA, 4)}
    v_add_f32 {v(AV)}, {v(AV)}, {v(AV + 1)}
    v_add_f32 {v(AV + 2)}, {v(AV + 2)}, {v(AV + 3)}
    v_mfma_f32_16x16x32_bf16 {v(PV[0], 4)}, {v(VX, 4)}, {v(PX, 4)}, 0
    v_add_f32 {v(AV + 4)}, {v(AV + 4)}, {v(AV + 5)}
    v_add_f32 {v(AV + 6)}, {v(AV + 6)}, {v(AV + 7)}
    v_mfma_f32_16x16x32_bf16 {v(PV[1], 4)}, {v(VX + 4, 4)}, {v(PX, 4)}, 0
    v_cvt_pk_bf16_f32 {v(VM)}, {v(AV)}, {v(AV + 2)}
    v_cvt_pk_bf16_f32 {v(VM + 1)}, {v(AV + 4)}, {v(AV + 6)}
    v_lshrrev_b32 {v(AV)}, 1, {v(cW16)}
    s_add_u32 s{sT0}, s{sKVC}, {OFF_KM}
    s_add_u32 s{sT1}, s{sKVC}, {OFF_VM}
    v_mfma_f32_16x16x16_bf16 {v(PV[0], 4)}, {v(VM, 2)}, {v(PM, 2)}, {v(PV[0], 4)}
    v_mfma_f32_16x16x16_bf16 {v(PV[1], 4)}, {v(VM, 2)}, {v(PM + 2, 2)}, {v(PV[1], 4)}
    v_rcp_f32 {v(LA)}, {v(LA)}
    s_waitcnt lgkmcnt(0)
    buffer_store_dwordx4 {v(KMF, 4)}, {v(cW16)}, {ws}, s{sT0} offen sc1
    buffer_store_dwordx2 {v(VM, 2)}, {v(AV)}, {ws}, s{sT1} offen sc1
    s_add_u32 s{sKVC}, s{sKVC}, {SEG_STRIDE}
    s_cmp_eq_u32 s{sSTEP}, {OPT["steps"] - 1}
    s_cbranch_scc1 {L("done")}
    """)
    OD = AQ
    for u in range(2):
        A(f"""
        v_cndmask_b32 {v(PV[u])}, {v(PV[u])}, {v(PV[u] + 2)}, {s(sPAR, 2)}
        v_cndmask_b32 {v(PV[u] + 1)}, {v(PV[u] + 1)}, {v(PV[u] + 3)}, {s(sPAR, 2)}
        v_mul_f32 {v(PV[u])}, {v(PV[u])}, {v(LA)}
        v_mul_f32 {v(PV[u] + 1)}, {v(PV[u] + 1)}, {v(LA)}
        v_cvt_pk_bf16_f32 {v(OD + u)}, {v(PV[u])}, {v(PV[u] + 1)}
        """)
    A(f"ds_write_b64 {v(cOXW)}, {v(OD, 2)}")
    stamp(5)
    for k in range(12):
        A(f"v_mov_b32 {v(MA + k)}, 0")
    A("s_waitcnt lgkmcnt(0)")
    A("s_barrier")
    OA = T
    A(f"ds_read_b128 {v(OA, 4)}, {v(cL16)} offset:{H_OX - HB}")
    A(f"ds_read_b128 {v(OA + 4, 4)}, {v(cL16)} offset:{H_OX - HB + 1024}")
    for k in range(12, 32):
        A(f"v_mov_b32 {v(MA + k)}, 0")
    A("s_waitcnt lgkmcnt(0)")
    stamp(6)

    def wo(c, t2):
        return f"v_smfmac_f32_16x16x64_bf16 {v(MA + 4 * c, 4)}, {v(OA + 4 * t2, 4)}, {wreg(('O', 4 * t2 + (c >> 1)), c & 1)}, {v(cIDX)}"

    def post(c):
        b = MA + 4 * c
        return [f"v_add_f32 {v(b)}, {v(b)}, {v(b + 1)}",
                f"v_add_f32 {v(b + 2)}, {v(b + 2)}, {v(b + 3)}",
                f"v_cvt_pk_bf16_f32 {v(b)}, {v(b)}, {v(b + 2)}",
                f"buffer_store_dword {v(b)}, {v(cPST)}, {ws}, s{sPS + c} offen {sc}"]

    for c in range(10):
        p = post(c - 2) if c >= 2 else []
        if c < 8:
            A(wo(c, 0))
            emit(p[:2])
            A(wo(c, 1))
            emit(p[2:])
        else:
            emit(p)
    stamp(7)
    R = AQ
    SELR = AK
    RD = AK + 4
    A.label(L("r1"))
    for m in range(8):
        A(f"buffer_load_dword {v(R + m)}, {v(cL4)}, {ws}, s{sPL} offen offset:{256 * m} sc1")
    for k in range(4):
        A(f"v_mov_b32 {v(SELR + k)}, {v(cSEL)}")
    A(f"""
    s_waitcnt vmcnt(4)
    v_mfma_f32_16x16x32_bf16 {v(RD, 4)}, {v(SELR, 4)}, {v(R, 4)}, 0
    s_waitcnt vmcnt(0)
    v_mfma_f32_16x16x32_bf16 {v(RD, 4)}, {v(SELR, 4)}, {v(R + 4, 4)}, {v(RD, 4)}
    v_max3_u32 {v(T)}, {v(R)}, {v(R + 1)}, {v(R + 2)}
    v_max3_u32 {v(T + 1)}, {v(R + 3)}, {v(R + 4)}, {v(R + 5)}
    v_max3_u32 {v(T)}, {v(T)}, {v(R + 6)}, {v(R + 7)}
    v_max_u32 {v(T)}, {v(T)}, {v(T + 1)}
    v_cmp_eq_u32 vcc, -1, {v(T)}
    s_cbranch_vccz {L("r1ok")}
    """)
    timeout_check()
    A(f"s_branch {L('r1')}")
    A.label(L("r1ok"))
    A(f"""
    v_cvt_pk_bf16_f32 {v(RD)}, {v(RD)}, {v(RD)}
    buffer_store_short {v(RD)}, {v(cMST)}, {ws}, s{sMP} offen {sc}
    """)
    stamp(8)
    M1 = T + 4
    A(f"""
    v_mov_b32 {v(M1)}, -1
    v_mov_b32 {v(M1 + 1)}, -1
    v_mov_b32 {v(M1 + 2)}, -1
    v_mov_b32 {v(M1 + 3)}, -1
    v_lshlrev_b32 {v(T + 1)}, 2, {v(cL4)}
    buffer_store_short {v(M1)}, {v(cMST)}, {ws}, s{sMR} offen {sc}
    buffer_store_dwordx4 {v(M1, 4)}, {v(T + 1)}, {ws}, s{sPL} offen {sc}
    buffer_store_dwordx4 {v(M1, 4)}, {v(T + 1)}, {ws}, s{sPL} offen offset:1024 {sc}
    """)
    emit(kv_read(T))
    emit(fifo_load(("Q", 0)) + fifo_load(("V", 0)))
    for k in range(24):
        A(f"v_mov_b32 {v(AQ + k)}, 0")
    for c in range(8):
        A(f"s_xor_b32 s{sPS + c}, s{sPS + c}, 0x40000")
    A(f"""
    s_xor_b32 s{sPL}, s{sPL}, 0x40000
    s_xor_b32 s{sMP}, s{sMP}, 0x2000
    s_xor_b32 s{sMR}, s{sMR}, 0x2000
    s_xor_b32 s{sP0}, s{sP0}, 0x2000
    s_xor_b32 s{sP1}, s{sP1}, 0x2000
    s_add_u32 s{sSTEP}, s{sSTEP}, 1
    s_waitcnt lgkmcnt(0)
    """)
    if OPT["trace"]:
        A(f"""
        s_lshl_b32 s{sT0}, s{sID}, 2
        s_add_u32 s{sT0}, s{sT0}, s{sW}
        s_lshl_b32 s{sT0}, s{sT0}, 6
        s_add_u32 s{sT0}, s{sT0}, s{sSTEP}
        s_lshl_b32 s{sT0}, s{sT0}, 6
        s_add_u32 s{sT0}, s{sT0}, {WS_MEMDUMP + 0x100000:#x}
        s_mov_b64 exec, 1
        v_mov_b32 {v(T + 2)}, 0
        """)
        for k in range(9):
            A(f"v_mov_b32 {v(T + 3)}, s{sTS + 2 * k}")
            A(f"buffer_store_dword {v(T + 3)}, {v(T + 2)}, {ws}, s{sT0} offen offset:{4 * k}")
        A("s_mov_b64 exec, -1")
    A(f"s_branch {L('loop')}")

    A.label(L("slow"))
    A(f"""
    v_max3_f32 {v(T)}, {v(X)}, {v(X + 1)}, {v(X + 2)}
    v_max3_f32 {v(T)}, {v(T)}, {v(X + 3)}, {v(SMM)}
    v_max_f32 {v(T)}, {v(T)}, {v(SMM + 2)}
    v_max_f32_dpp {v(T)}, {v(T)}, {v(T)} quad_perm:[1,0,3,2] row_mask:0xf bank_mask:0xf
    v_mov_b32 {v(T + 1)}, {v(T)}
    v_permlane16_swap_b32 {v(T)}, {v(T + 1)}
    v_max_f32 {v(T)}, {v(T)}, {v(T + 1)}
    v_mov_b32 {v(T + 1)}, {v(T)}
    v_permlane32_swap_b32 {v(T)}, {v(T + 1)}
    v_max_f32 {v(T)}, {v(T)}, {v(T + 1)}
    v_sub_f32 {v(X)}, {v(X)}, {v(T)}
    v_sub_f32 {v(X + 1)}, {v(X + 1)}, {v(T)}
    v_sub_f32 {v(X + 2)}, {v(X + 2)}, {v(T)}
    v_sub_f32 {v(X + 3)}, {v(X + 3)}, {v(T)}
    v_sub_f32 {v(SMM)}, {v(SMM)}, {v(T)}
    v_sub_f32 {v(SMM + 2)}, {v(SMM + 2)}, {v(T)}
    s_branch {L("soft")}
    """)
    A.label(L("done"))
    A(f"""
    s_memtime {s(98, 2)}
    s_waitcnt lgkmcnt(0)
    s_sub_u32 s{sT0}, s98, s75
    s_or_b32 s{sT1}, s{sID}, s{sW}
    s_cmp_lg_u32 s{sT1}, 0
    s_cbranch_scc1 L_end
    v_mov_b32 {v(T + 2)}, 0
    v_mov_b32 {v(T + 3)}, s{sT0}
    s_mov_b64 exec, 1
    buffer_store_dword {v(T + 3)}, {v(T + 2)}, {srd(SRD_DBG)}, 0 offen offset:32
    s_branch L_end
    """)


def head():
    head_setup()
    A(f"""
    s_cmp_lg_u32 s{sT1}, 0
    s_cbranch_scc1 L_head_slow
    """)
    head_loop("", "hf")
    A.label("L_head_slow")
    head_loop("sc1", "hs")


def epilogue():
    A(f"""
L_timeout:
    s_mov_b64 exec, 1
    v_mov_b32 v1, 0
    v_mov_b32 v2, 1
    buffer_atomic_add v2, v1, {srd(SRD_DBG)}, 0 offen offset:{DBG_ERR} sc1
    s_waitcnt vmcnt(0)
L_end:
    s_endpgm
    """)


def build():
    prologue()
    head()
    epilogue()
    n = A.fix_hazards(verbose=bool(OPT.get("vnop", 0)))
    if OPT.get("prof"):
        from asmdsl import Inst
        pos = [int(x) for x in OPT["prof"].split(",")]
        i0 = A.items.index(("l", "L_hf_ref")) + 2
        names = []
        for k, p in sorted(enumerate(pos), key=lambda z: -z[1]):
            it = A.items[i0 + p]
            A.items.insert(i0 + p, ("i", Inst(f"s_memtime {s(TSREG[k + 1], 2)}")))
        i1 = A.items.index(("l", "L_hf_p1retry"))
        open(sys.argv[1] + ".loop", "w").write("\n".join((x[1].text if x[0] == "i" else str(x[1]) + ":") for x in A.items[i0:i1] if not (x[0] == "i" and x[1].op == "s_memtime")))
    ref = open(f"cdna_kernels/{NAME}.s.ref").read().split("\n")
    hdr = [l for l in ref if l.startswith(";") and "@launch" not in l and "Override" not in l and "grid=ceil" not in l]
    out = "\n".join(hdr) + "\n"
    out += "; @launch grid=(256,1,1) block=(256,1,1) lds=163840\n"
    out += f""".amdgcn_target "amdgcn-amd-amdhsa--gfx950"
.text
.globl {NAME}_kernel
.p2align 8
.type {NAME}_kernel,@function
{NAME}_kernel:
"""
    out += A.text()
    out += f""".section .rodata,"a"
.p2align 6
.amdhsa_kernel {NAME}_kernel
  .amdhsa_next_free_vgpr 512
  .amdhsa_next_free_sgpr 102
  .amdhsa_accum_offset 256
  .amdhsa_group_segment_fixed_size 0
  .amdhsa_kernarg_size 112
  .amdhsa_user_sgpr_count 2
  .amdhsa_user_sgpr_kernarg_segment_ptr 1
  .amdhsa_system_sgpr_workgroup_id_x 1
.end_amdhsa_kernel
"""
    open(sys.argv[1], "w").write(out)
    print("nop states inserted:", n, "instrs:", sum(1 for x in A.items if x[0] == "i"))


build()
```
